```python
import torch

def _softmax(x, axis=-1):
    return torch.softmax(x, dim=axis)
def _gelu(x):
    return torch.nn.functional.gelu(x, approximate="tanh")
def _silu(x):
    return torch.nn.functional.silu(x)
def _sigmoid(x):
    return torch.sigmoid(x)
def _layernorm(x, axis=-1, eps=1e-5):
    m = x.mean(dim=axis, keepdim=True)
    v = x.var(dim=axis, keepdim=True, unbiased=False)
    return (x - m) / torch.sqrt(v + eps)
def _scatter_add(tgt, idx, src, axis=0):
    return tgt.clone().index_add_(axis, idx, src)
def _segment_sum(src, seg, n):
    out = torch.zeros((n,) + src.shape[1:], dtype=src.dtype)
    return out.index_add_(0, seg, src)
def _pad(x, pw):
    flat = tuple(v for pair in reversed(pw) for v in pair)
    return torch.nn.functional.pad(x, flat)

kernel_name = 'gated_mix__grouped_kv_mqa__dense_activation_gelu__prompt'

def setup_inputs():

    _w = (lambda a: (lambda t: t.to(torch.bfloat16) if t.is_floating_point() else t)(torch.as_tensor(a)))
    def _A_setup():
        B, S, D, H = 1, 2048, 448, 16
        Dh = D // H
        return {
            "x": _w((lambda *s: torch.randn(*s, dtype=torch.bfloat16) * 0.05)(B, S, D)),
            "wq": _w((lambda *s: torch.randn(*s, dtype=torch.bfloat16) * 1.6)(D, H * Dh)),
            "wk": _w((lambda *s: torch.randn(*s, dtype=torch.bfloat16) * 1.6)(D, Dh)),
            "wv": _w((lambda *s: torch.randn(*s, dtype=torch.bfloat16) * 0.05)(D, Dh)),
            "wo": _w((lambda *s: torch.randn(*s, dtype=torch.bfloat16) * 0.05)(H * Dh, D)),
        }
    _A_in = _A_setup()

    def _B_setup():
        B, S, D, F = 1, 2048, 448, 1792
        return {
            "x": _w((lambda *s: torch.randn(*s, dtype=torch.bfloat16) * 0.05)(B, S, D)),
            "w1": _w((lambda *s: torch.randn(*s, dtype=torch.bfloat16) * 3.2)(D, F) * (D ** -0.5)),
            "b1": _w((lambda *s: torch.randn(*s, dtype=torch.bfloat16) * 3.2)(F) * 0.01),
            "w2": _w((lambda *s: torch.randn(*s, dtype=torch.bfloat16) * 0.4)(F, D) * (F ** -0.5)),
            "b2": _w((lambda *s: torch.randn(*s, dtype=torch.bfloat16) * 0.8)(D) * 0.01),
        }
    _B_in = _B_setup()

    return {
        "A_x": _A_in["x"],
        "A_wq": _A_in["wq"],
        "A_wk": _A_in["wk"],
        "A_wv": _A_in["wv"],
        "A_wo": _A_in["wo"],
        "B_x": _B_in["x"],
        "B_w1": _B_in["w1"],
        "B_b1": _B_in["b1"],
        "B_w2": _B_in["w2"],
        "B_b2": _B_in["b2"],
        "gate_w": _w((lambda *s: torch.randn(*s, dtype=torch.bfloat16) * 0.05)(448) * 16.0),
    }

def reference(A_x, A_wq, A_wk, A_wv, A_wo, B_x, B_w1, B_b1, B_w2, B_b2, gate_w):
    def _A_ref(x, wq, wk, wv, wo):
        B, S, D = x.shape
        H = 16
        Dh = D // H
        q = (lambda x, *d: x.permute(*d))((x @ wq).reshape(B, S, H, Dh), 0, 2, 1, 3)
        k = x @ wk
        v = x @ wv
        scores = torch.einsum("bhqd,bkd->bhqk", q, k) * (Dh ** -0.5)
        p = _softmax(scores, axis=-1)
        o = torch.einsum("bhqk,bkd->bhqd", p, v)
        return (lambda x, *d: x.permute(*d))(o, 0, 2, 1, 3).reshape(B, S, H * Dh) @ wo

    def _B_ref(x, w1, b1, w2, b2):
        h = torch.einsum("bsd,df->bsf", x, w1) + b1
        h = _gelu(h)
        return torch.einsum("bsf,fd->bsd", h, w2) + b2

    x = A_x
    g = _sigmoid((x * gate_w).sum(-1, keepdims=True))
    a = _A_ref(x, A_wq, A_wk, A_wv, A_wo)
    b = _B_ref(x, B_w1, B_b1, B_w2, B_b2)
    return g * a + (1 - g) * b
```

```python
import re

class Asm:
    def __init__(self):
        self.lines = []
    def __call__(self, s):
        for l in s.split("\n"):
            l = l.strip()
            if l:
                self.lines.append(l)
    def label(self, n):
        self.lines.append(n + ":")
    def comment(self, s):
        self.lines.append("; " + s)
    def nop(self, n):
        while n > 0:
            k = min(n, 16)
            self.lines.append(f"s_nop {k-1}")
            n -= k
    def text(self):
        out = []
        for l in self.lines:
            if l.endswith(":") or l.startswith(".") or l.startswith(";"):
                out.append(l)
            else:
                out.append("  " + l)
        return "\n".join(out) + "\n"

def vr(b, n=1):
    return f"v{b}" if n == 1 else f"v[{b}:{b+n-1}]"
def sr(b, n=1):
    return f"s{b}" if n == 1 else f"s[{b}:{b+n-1}]"

_REG = re.compile(r"\b([vsa])(?:(\d+)|\[(\d+):(\d+)\])")
def regs(op):
    op = op.strip()
    out = set()
    for m in _REG.finditer(op):
        k = m.group(1)
        if m.group(2) is not None:
            out.add((k, int(m.group(2))))
        else:
            for i in range(int(m.group(3)), int(m.group(4)) + 1):
                out.add((k, i))
    if re.search(r"\bvcc\b", op): out |= {("s", 106), ("s", 107)}
    if re.search(r"\bexec\b", op): out |= {("s", 126), ("s", 127)}
    if re.search(r"\bm0\b", op): out.add(("s", 124))
    return out

TRANS = ("v_exp_", "v_log_", "v_rcp_", "v_rsq_", "v_sqrt_", "v_sin_", "v_cos_")

def parse(line):
    line = line.split(";")[0].strip()
    if not line or line.endswith(":") or line.startswith("."):
        return None
    parts = line.split(None, 1)
    mn = parts[0]
    ops = []
    if len(parts) > 1:
        depth = 0; cur = ""
        for ch in parts[1]:
            if ch == "[": depth += 1
            if ch == "]": depth -= 1
            if ch == "," and depth == 0:
                ops.append(cur); cur = ""
            else:
                cur += ch
        ops.append(cur)
    I = dict(mn=mn, ops=ops, w=set(), r=set(), line=line)
    isv = mn.startswith("v_")
    I["mfma"] = mn.startswith("v_mfma")
    I["valu"] = isv and not I["mfma"]
    I["trans"] = mn.startswith(TRANS)
    I["vmem"] = mn.startswith(("buffer_", "global_", "flat_"))
    I["ds"] = mn.startswith("ds_")
    I["salu"] = mn.startswith("s_")
    lds = " lds" in (" " + line.split(None,1)[1] if len(parts) > 1 else "") and I["vmem"]
    I["ldsdma"] = lds or mn.startswith("global_load_lds")
    if I["mfma"]:
        I["w"] = regs(ops[0]); I["A"] = regs(ops[1]); I["B"] = regs(ops[2]); I["C"] = regs(ops[3].split()[0])
        I["r"] = I["A"] | I["B"] | I["C"]
        I["passes"] = 8 if "32x32" in mn else 4
    elif isv:
        if mn.startswith("v_cmp"):
            I["w"] = regs(ops[0]); I["r"] = set().union(*[regs(o) for o in ops[1:]])
            if mn.startswith("v_cmpx"): I["w"] |= {("s",126),("s",127)}
        elif mn.startswith(("v_permlane32_swap", "v_permlane16_swap", "v_swap")):
            I["w"] = regs(ops[0]) | regs(ops[1]); I["r"] = set(I["w"])
        elif mn.startswith(("v_add_co", "v_sub_co", "v_addc_co", "v_subb_co")):
            I["w"] = regs(ops[0]) | regs(ops[1]); I["r"] = set().union(*[regs(o) for o in ops[2:]])
        elif mn == "v_nop":
            pass
        else:
            I["w"] = regs(ops[0]); I["r"] = set().union(set(), *[regs(o) for o in ops[1:]])
            if mn.startswith(("v_fmac", "v_dot2c", "v_pk_fmac")): I["r"] |= I["w"]
    elif I["vmem"]:
        if "store" in mn or ("atomic" in mn) or I["ldsdma"] or mn in ("buffer_wbl2", "buffer_inv"):
            I["r"] = set().union(set(), *[regs(o) for o in ops])
            if "atomic" in mn and "sc0" in line: I["w"] = regs(ops[0])
            if I["ldsdma"]: I["r"].add(("s",124))
            if "store" in mn:
                d = ops[0] if mn.startswith("buffer_") else ops[1]
                I["sdata"] = regs(d)
                I["wide"] = mn.endswith(("x3", "x4"))
        else:
            I["w"] = regs(ops[0]); I["r"] = set().union(*[regs(o) for o in ops[1:]])
    elif I["ds"]:
        if mn.startswith(("ds_read", "ds_bpermute", "ds_permute", "ds_swizzle")) or "_rtn" in mn:
            I["w"] = regs(ops[0]); I["r"] = set().union(*[regs(o) for o in ops[1:]])
        else:
            I["r"] = set().union(*[regs(o) for o in ops])
    elif I["salu"]:
        if mn.startswith(("s_cmp", "s_cbranch", "s_branch", "s_waitcnt", "s_nop", "s_barrier", "s_endpgm", "s_setprio", "s_sleep", "s_bitcmp")):
            I["r"] = set().union(set(), *[regs(o) for o in ops])
        else:
            I["w"] = regs(ops[0]); I["r"] = set().union(set(), *[regs(o) for o in ops[1:]])
            if "saveexec" in mn: I["w"] |= {("s",126),("s",127)}
    I["ws"] = 1
    if mn == "s_nop": I["ws"] = int(ops[0], 0) + 1
    return I

def check(lines, name=""):
    ins = [parse(l) for l in lines]
    ins = [i for i in ins if i]
    probs = []
    for n, c in enumerate(ins):
        dist = 0
        for p_i in range(n - 1, max(-1, n - 24), -1):
            p = ins[p_i]
            need = 0; why = ""
            vw = {x for x in p["w"] if x[0] in "va"}
            sw = {x for x in p["w"] if x[0] == "s"}
            if p["valu"]:
                if c["mfma"] and vw & c["r"]: need, why = max(need, 2), "valu->mfma"
                if p["trans"] and c["valu"] and not c["trans"] and vw & c["r"]: need, why = max(need,1), "trans->valu"
                if p["trans"] and c["trans"] and vw & c["r"]: need, why = max(need,1), "trans->trans(pad)"
                if c["mn"].startswith("v_permlane") and vw & c["r"]: need, why = max(need,2), "valu->permlane"
                if c["mn"].startswith(("v_readfirstlane","v_readlane")) and vw & c["r"]: need, why = max(need,1), "valu->readlane"
                if "dpp" in c["mn"] and vw & c["r"]: need, why = max(need,2), "valu->dpp"
                if sw and c["vmem"] and sw & c["r"]: need, why = max(need,5), "valu sgpr->vmem"
                if sw and c["valu"] and sw & c["r"]: need, why = max(need,2), "valu sgpr->valu"
                if sw and c["mn"].startswith("v_cndmask") and ("s",106) in sw and "vcc" in c["line"]: need, why = max(need,2), "vcc->cndmask"
                if sw and c["salu"] and sw & c["r"]: need, why = max(need,2), "valu sgpr->salu(pad)"
                if ("s",126) in sw and c["mfma"]: need, why = max(need,4), "valu exec->mfma"
            if p["mfma"]:
                big = p["passes"] == 8
                if c["mfma"]:
                    if vw & (c["A"] | c["B"]): need, why = max(need, 12 if big else 8), "mfma->mfma AB"
                    if vw & c["C"]:
                        if not (c["C"] == vw and c["passes"] == p["passes"]): need, why = max(need, 10 if big else 6), "mfma->mfma C overlap"
                elif (c["valu"] or c["vmem"] or c["ds"]) and vw & (c["r"] | c["w"]):
                    need, why = max(need, 12 if big else 8), "mfma D->valu/mem"
                if c["valu"] and p["C"] & c["w"] and not (vw & c["w"]): need, why = max(need, 7 if big else 3), "mfma C WAR"
            if p["salu"] and ("s",124) in p["w"] and c.get("ldsdma"): need, why = max(need,1), "m0->ldsdma"
            if p.get("wide") and p["sdata"] & c["w"]: need, why = max(need, 2 if c["valu"] else 1), "store data WAR"
            if need > dist:
                probs.append(f"{name}: need {need} have {dist} [{why}]: '{p['line']}' -> '{c['line']}'")
            dist += p["ws"]
            if dist >= 20: break
    return probs
```

```python
import sys, struct, math
from asmlib import *

NAME = "gated_mix__grouped_kv_mqa__dense_activation_gelu__prompt"
def f2u(x): return struct.unpack("<I", struct.pack("<f", x))[0]

KV_OFF = 0
G_OFF = 0x40000
Q_OFF = 0x100000
O_OFF = 0x300000
H_OFF = 0x500000
WS_BYTES = 0x500000 + 64*112*1024
ROLE = [0,1,12,2,13,3,14,4,5,15,6,7,8,9,10,11]
ROLE_TBL = sum(v << (4*j) for j, v in enumerate(ROLE))
P3IDX = [0,1,2,3,4,5,6,7,8,9,10,15,11,15,12,13]
P3_TBL = sum(v << (4*j) for j, v in enumerate(P3IDX))
QSCALE = math.log2(math.e) / math.sqrt(28.0)
GC0 = -2.0*math.sqrt(2.0/math.pi)*math.log2(math.e)
GC1 = GC0*0.044715

PX, PWQ, PWK, PWV, PWO, PBX, PW1, PB1, PW2, PB2, PGW, POUT, PDBG, PWS = [16+2*i for i in range(14)]

def srd(a, d, ptr, nbytes):
    a(f"s_mov_b32 s{d}, s{ptr}")
    a(f"s_mov_b32 s{d+1}, s{ptr+1}")
    a(f"s_mov_b32 s{d+2}, {nbytes}")
    a(f"s_mov_b32 s{d+3}, 0x00020000")

def mfma(a, d, A, B, c=None):
    cs = vr(d,16) if c is None else (c if isinstance(c,str) else vr(c,16))
    a(f"v_mfma_f32_32x32x16_bf16 {vr(d,16)}, {vr(A,4)}, {vr(B,4)}, {cs}")

def prologue(a, kname):
    a(f".globl {kname}")
    a(".p2align 8")
    a(f".type {kname},@function")
    a.label(kname)
    a(f"s_cmp_ge_u32 s2, 256")
    a(f"s_cbranch_scc1 {kname}_exit")
    a("s_load_dwordx16 s[16:31], s[0:1], 0")
    a("s_load_dwordx8 s[32:39], s[0:1], 64")
    a("s_load_dwordx4 s[40:43], s[0:1], 96")
    a("v_lshrrev_b32 v1, 6, v0")
    a("s_and_b32 s4, s2, 7")
    a("s_lshr_b32 s5, s2, 3")
    a("v_readfirstlane_b32 s3, v1")
    a("v_and_b32 v1, 63, v0")
    a("s_lshl_b32 s4, s4, 1")
    a("s_lshr_b32 s6, s5, 4")
    a("s_add_u32 s4, s4, s6")
    a("s_and_b32 s5, s5, 15")

def tbl_lookup(a, dst, tbl, tmp):
    a(f"s_mov_b32 s{tmp}, {tbl & 0xffffffff:#x}")
    a(f"s_mov_b32 s{tmp+1}, {tbl >> 32:#x}")
    a(f"s_lshl_b32 s{dst}, s5, 2")
    a(f"s_lshr_b64 s[{tmp}:{tmp+1}], s[{tmp}:{tmp+1}], s{dst}")
    a(f"s_and_b32 s{dst}, s{tmp}, 15")

def kdesc(a, kname, nv):
    a('.section .rodata,"a"')
    a(".p2align 6")
    a(f".amdhsa_kernel {kname}")
    a(f".amdhsa_next_free_vgpr {nv}")
    a(".amdhsa_next_free_sgpr 102")
    a(f".amdhsa_accum_offset {nv}")
    a(".amdhsa_group_segment_fixed_size 0")
    a(".amdhsa_kernarg_size 112")
    a(".amdhsa_user_sgpr_count 2")
    a(".amdhsa_user_sgpr_kernarg_segment_ptr 1")
    a(".amdhsa_system_sgpr_workgroup_id_x 1")
    a(".amdhsa_float_denorm_mode_32 3")
    a(".end_amdhsa_kernel")
    a(".text")

def unpack_bf16x4(a, dst, src):
    a(f"v_lshlrev_b32 v{dst}, 16, v{src}")
    a(f"v_and_b32 v{dst+1}, 0xffff0000, v{src}")
    a(f"v_lshlrev_b32 v{dst+2}, 16, v{src+1}")
    a(f"v_and_b32 v{dst+3}, 0xffff0000, v{src+1}")

def k1(a):
    K = "p1_kernel"
    SLOT = 36864
    RX, RWA, RWB, RWQ = 0, 16384, 24576, 32768
    SX, SWQ, SW1, SWK, SWV, SB1, SGW, SWS, SWB = 44, 48, 52, 56, 60, 64, 68, 72, 76
    vX0, vX1, vWA, vWB, vWQ, vGA = 2, 3, 4, 5, 6, 7
    vXr, vWr, vQr = 8, 12, 13
    cXr, cWr, cQr = 16, 20, 21
    vG, vZ = 24, 31
    ACC = [32, 48, 64]
    XF = [80, 84]
    WF = [[88, 92, 96], [100, 104, 108]]
    T = 112
    prologue(a, K)
    tbl_lookup(a, 6, ROLE_TBL, 8)
    a("s_lshl_b32 s7, s6, 1")
    a("s_add_u32 s8, s6, 12")
    a("s_cmp_lt_u32 s6, 12")
    a("s_cselect_b32 s7, s7, s8")
    a("s_cselect_b32 s9, 1605632, 0")
    a("v_lshrrev_b32 v112, 3, v1")
    a("v_and_b32 v113, 7, v1")
    a("v_lshrrev_b32 v114, 4, v1")
    a("s_lshl_b32 s10, s4, 7")
    a("s_lshl_b32 s11, s3, 4")
    a("s_add_u32 s10, s10, s11")
    a("v_add_u32 v115, s10, v112")
    a("v_mul_u32_u24 v115, 896, v115")
    a("v_xor_b32 v116, v113, v114")
    a(f"v_lshl_add_u32 v{vX0}, v116, 4, v115")
    a("v_xor_b32 v116, 4, v116")
    a(f"v_lshl_add_u32 v{vX1}, v116, 4, v115")
    a(f"v_add_u32 v{vX1}, {8*896}, v{vX1}")
    a("v_and_b32 v116, 1, v114")
    a("v_lshlrev_b32 v116, 2, v116")
    a("v_xor_b32 v116, v113, v116")
    a("s_lshl_b32 s11, s3, 3")
    a("v_add_u32 v117, s11, v112")
    a("v_mul_u32_u24 v118, 3584, v117")
    a("v_lshl_add_u32 v118, v116, 4, v118")
    a("s_lshl_b32 s11, s7, 7")
    a(f"v_add_u32 v{vWA}, s11, v118")
    a(f"v_add_u32 v{vWB}, 128, v{vWA}")
    a("v_mul_u32_u24 v118, 56, v117")
    a("v_and_b32 v119, 3, v116")
    a("v_lshl_add_u32 v118, v119, 4, v118")
    a("s_cmp_eq_u32 s6, 15")
    a("s_cselect_b64 s[12:13], -1, 0")
    a(f"v_cndmask_b32 v{vWB}, v{vWB}, v118, s[12:13]")
    a("v_lshrrev_b32 v117, 2, v1")
    a("s_lshl_b32 s11, s3, 4")
    a("v_add_u32 v117, s11, v117")
    a("v_mul_u32_u24 v118, 896, v117")
    a("v_and_b32 v119, 3, v1")
    a("v_lshl_add_u32 v118, v119, 4, v118")
    a("s_mul_i32 s11, s5, 56")
    a(f"v_add_u32 v{vWQ}, s11, v118")
    a("v_and_b32 v117, 15, v1")
    a("s_lshl_b32 s11, s3, 4")
    a("v_add_u32 v117, s11, v117")
    a(f"v_lshlrev_b32 v{vGA}, 6, v117")
    a("v_lshlrev_b32 v120, 1, v117")
    a("v_and_b32 v117, 31, v1")
    a("s_and_b32 s11, s3, 3")
    a("s_lshl_b32 s11, s11, 5")
    a("v_add_u32 v117, s11, v117")
    a("v_lshrrev_b32 v118, 5, v1")
    a("v_bfe_u32 v119, v117, 1, 3")
    a("v_xor_b32 v119, v119, v118")
    a("v_lshlrev_b32 v117, 7, v117")
    for s in range(4):
        a(f"v_xor_b32 v121, {2*s}, v119")
        a(f"v_lshl_add_u32 v{vXr+s}, v121, 4, v117")
    a("v_bfe_u32 v121, v1, 2, 2")
    a("v_lshl_add_u32 v122, v118, 3, v121")
    a("v_and_b32 v123, 1, v114")
    a("v_bfe_u32 v124, v1, 1, 1")
    a("v_lshl_add_u32 v124, v123, 1, v124")
    a("v_lshrrev_b32 v125, 1, v121")
    a("s_lshr_b32 s11, s3, 2")
    a("v_xor_b32 v125, s11, v125")
    a("v_lshl_add_u32 v124, v125, 2, v124")
    a("v_lshlrev_b32 v125, 7, v122")
    a("v_lshl_add_u32 v125, v124, 4, v125")
    a("v_and_b32 v126, 1, v1")
    a(f"v_lshl_add_u32 v{vWr}, v126, 3, v125")
    a("v_lshlrev_b32 v125, 6, v122")
    a("v_lshl_add_u32 v125, v123, 5, v125")
    a("v_and_b32 v126, 3, v1")
    a(f"v_lshl_add_u32 v{vQr}, v126, 3, v125")
    a(f"v_mov_b32 v{vZ}, 0")
    a("v_lshlrev_b32 v127, 3, v118")
    a("s_waitcnt lgkmcnt(0)")
    srd(a, SX, PX, 2048*896); srd(a, SWQ, PWQ, 448*896); srd(a, SW1, PW1, 448*3584)
    srd(a, SWK, PWK, 448*56); srd(a, SWV, PWV, 448*56); srd(a, SB1, PB1, 3584); srd(a, SGW, PGW, 896)
    srd(a, SWS, PWS, WS_BYTES)
    srd(a, SWB, PW1, 0); a(f"s_mov_b32 s{SWB+2}, s9")
    a("s_lshl_b32 s10, s7, 7")
    a("s_lshr_b32 s11, s3, 2")
    a("s_lshl_b32 s11, s11, 6")
    a("s_add_u32 s10, s10, s11")
    for tl in range(2):
        for g4 in range(4):
            a(f"buffer_load_dwordx2 {vr(T+16+tl*8+2*g4,2)}, v127, {sr(SB1,4)}, s10 offen offset:{tl*128+16*g4}")
    for st in range(7):
        a(f"buffer_load_ushort v{vG+st}, v120, {sr(SGW,4)}, 0 offen offset:{st*128}")
    a("s_cmp_eq_u32 s6, 15")
    a("s_cbranch_scc1 p1_kv")
    a("s_cmp_lt_u32 s3, 4")
    a("s_cbranch_scc1 p1_n_A")
    a("s_branch p1_n_B")
    a.label("p1_kv")
    a("s_cmp_lt_u32 s3, 4")
    a("s_cbranch_scc1 p1_kv_A")
    a("s_branch p1_kv_B")

    def dma(st, grpA, kv):
        slot = (st % 4) * SLOT
        n = 0
        a(f"s_lshl_b32 s10, s3, 11")
        a(f"s_add_u32 m0, s10, {slot+RX}")
        a(f"s_mov_b32 s11, {st*128}")
        a(f"buffer_load_dwordx4 v{vX0}, {sr(SX,4)}, s11 offen lds"); n += 1
        a(f"s_add_u32 m0, s10, {slot+RX+1024}")
        a(f"s_lshl_b32 s10, s3, 10")
        a(f"buffer_load_dwordx4 v{vX1}, {sr(SX,4)}, s11 offen lds"); n += 1
        a(f"s_add_u32 m0, s10, {slot+RWA}")
        a(f"s_mov_b32 s11, {st*64*3584}")
        a(f"buffer_load_dwordx4 v{vWA}, {sr(SW1,4)}, s11 offen lds"); n += 1
        a(f"s_add_u32 m0, s10, {slot+RWB}")
        if not kv:
            a("s_nop 0")
            a(f"buffer_load_dwordx4 v{vWB}, {sr(SWB,4)}, s11 offen lds"); n += 1
        else:
            a(f"s_mov_b32 s11, {st*64*56}")
            a("s_mov_b32 exec_lo, 0xf0f00f0f"); a("s_mov_b32 exec_hi, 0xf0f00f0f")
            a(f"buffer_load_dwordx4 v{vWB}, {sr(SWK,4)}, s11 offen lds"); n += 1
            a("s_not_b64 exec, exec")
            a(f"buffer_load_dwordx4 v{vWB}, {sr(SWV,4)}, s11 offen lds"); n += 1
            a("s_mov_b64 exec, -1")
        if grpA:
            a(f"s_add_u32 m0, s10, {slot+RWQ}")
            a(f"s_mov_b32 s11, {st*64*896}")
            a(f"buffer_load_dwordx4 v{vWQ}, {sr(SWQ,4)}, s11 offen lds"); n += 1
        return n

    def variant(lbl, grpA, kv):
        a.label(lbl)
        for st in range(4):
            D = dma(st, grpA, kv)
        a(f"s_waitcnt vmcnt({4*D+7})")
        for g4 in range(4):
            unpack_bf16x4(a, ACC[0]+4*g4, T+16+2*g4)
        if kv:
            for r in range(16): a(f"v_mov_b32 v{ACC[1]+r}, 0")
        else:
            for g4 in range(4):
                unpack_bf16x4(a, ACC[1]+4*g4, T+24+2*g4)
        if grpA:
            for r in range(16): a(f"v_mov_b32 v{ACC[2]+r}, 0")
        nj = 3 if grpA else 2
        def reads(s, b):
            a(f"ds_read_b128 {vr(XF[b],4)}, v{cXr+s} offset:{RX}")
            for t in range(2):
                a(f"ds_read_b64_tr_b16 {vr(WF[b][0]+2*t,2)}, v{cWr} offset:{RWA+2048*s+512*t}")
            for t in range(2):
                a(f"ds_read_b64_tr_b16 {vr(WF[b][1]+2*t,2)}, v{cWr} offset:{RWB+2048*s+512*t}")
            if grpA:
                for t in range(2):
                    a(f"ds_read_b64_tr_b16 {vr(WF[b][2]+2*t,2)}, v{cQr} offset:{RWQ+1024*s+256*t}")
        nr = 1 + 2*nj
        for st in range(7):
            slot = (st % 4) * SLOT
            later = min(max(3, st+2), 6) - st
            a(f"s_waitcnt vmcnt({later*D})")
            if grpA:
                a(f"v_add_u32 v{T}, {slot+RWQ}, v{vGA}")
                a(f"ds_write2_b32 v{T}, v{vG+st}, v{vZ} offset0:14 offset1:15")
            for s in range(4): a(f"v_add_u32 v{cXr+s}, {slot}, v{vXr+s}")
            a(f"v_add_u32 v{cWr}, {slot}, v{vWr}")
            a(f"v_add_u32 v{cQr}, {slot}, v{vQr}")
            a("s_waitcnt lgkmcnt(0)")
            a("s_barrier")
            reads(0, 0)
            if 1 <= st and st+3 <= 6:
                dma(st+3, grpA, kv)
            for s in range(4):
                b = s & 1
                if s < 3:
                    reads(s+1, b^1)
                    a(f"s_waitcnt lgkmcnt({nr})")
                else:
                    a("s_waitcnt lgkmcnt(0)")
                mfma(a, ACC[0], WF[b][0], XF[b])
                if kv and not grpA:
                    mfma(a, ACC[1], XF[b], WF[b][1])
                else:
                    mfma(a, ACC[1], WF[b][1], XF[b])
                if grpA:
                    mfma(a, ACC[2], WF[b][2], XF[b])
        a("v_lshlrev_b32 v2, 4, v1")
        a("s_lshl_b32 s10, s4, 2"); a("s_and_b32 s11, s3, 3"); a("s_add_u32 s10, s10, s11")
        a(f"s_mov_b32 s80, {f2u(GC1):#x}"); a(f"s_mov_b32 s81, {f2u(GC1):#x}")
        a(f"v_mov_b32 v4, {f2u(GC0):#x}"); a(f"v_mov_b32 v5, {f2u(GC0):#x}")
        a.nop(12)
        def gelu_store(acc, ftoff):
            a("s_mul_i32 s12, s10, 112")
            a("s_lshl_b32 s13, s7, 2"); a("s_add_u32 s12, s12, s13")
            a("s_lshr_b32 s13, s3, 2"); a("s_lshl_b32 s13, s13, 1"); a("s_add_u32 s12, s12, s13")
            a(f"s_add_u32 s12, s12, {2*ftoff}")
            a("s_lshl_b32 s12, s12, 10"); a(f"s_add_u32 s12, s12, {H_OFF}")
            for p in range(8):
                x = acc + 2*p; t = T + 2*p
                a(f"v_pk_mul_f32 {vr(t,2)}, {vr(x,2)}, {vr(x,2)}")
            for p in range(8):
                t = T + 2*p
                a(f"v_pk_fma_f32 {vr(t,2)}, {vr(t,2)}, s[80:81], v[4:5]")
            for p in range(8):
                x = acc + 2*p; t = T + 2*p
                a(f"v_pk_mul_f32 {vr(t,2)}, {vr(t,2)}, {vr(x,2)}")
            for r in range(16): a(f"v_exp_f32 v{T+r}, v{T+r}")
            for p in range(8):
                t = T + 2*p
                a(f"v_pk_add_f32 {vr(t,2)}, {vr(t,2)}, 1.0 op_sel_hi:[1,0]")
            for r in range(16): a(f"v_rcp_f32 v{T+r}, v{T+r}")
            for p in range(8):
                x = acc + 2*p; t = T + 2*p
                a(f"v_pk_mul_f32 {vr(t,2)}, {vr(t,2)}, {vr(x,2)}")
            for p in range(8):
                a(f"v_cvt_pk_bf16_f32 v{acc+p}, v{T+2*p}, v{T+2*p+1}")
            a(f"buffer_store_dwordx4 {vr(acc,4)}, v2, {sr(SWS,4)}, s12 offen")
            a(f"buffer_store_dwordx4 {vr(acc+4,4)}, v2, {sr(SWS,4)}, s12 offen offset:1024")
        def pack_store(acc, off):
            for p in range(8):
                a(f"v_cvt_pk_bf16_f32 v{T+p}, v{acc+2*p}, v{acc+2*p+1}")
            a(f"buffer_store_dwordx4 {vr(T,4)}, v2, {sr(SWS,4)}, s12 offen offset:{off}")
            a(f"buffer_store_dwordx4 {vr(T+4,4)}, v2, {sr(SWS,4)}, s12 offen offset:{off+1024}")
            a.nop(2)
        if kv:
            a("s_lshl_b32 s12, s10, 12")
            if KV_OFF: a(f"s_add_u32 s12, s12, {KV_OFF}")
            if grpA:
                a("s_mov_b32 exec_lo, 0")
                for r in range(12,16): a(f"v_mov_b32 v{ACC[1]+r}, 0")
                a("s_mov_b64 exec, -1")
                pack_store(ACC[1], 0)
            else:
                a("s_mov_b32 exec_lo, 0xe0000000"); a("s_mov_b32 exec_hi, 0xe0000000")
                for r in range(16): a(f"v_mov_b32 v{ACC[1]+r}, 0")
                a("s_mov_b32 exec_lo, 0x10000000"); a("s_mov_b32 exec_hi, 0x10000000")
                for r in range(16): a(f"v_mov_b32 v{ACC[1]+r}, 1.0")
                a("s_mov_b64 exec, -1")
                pack_store(ACC[1], 2048)
        if grpA:
            q = ACC[2]
            a(f"v_mul_f32 v6, {f2u(-math.log2(math.e)):#x}, v{q+12}")
            a("v_exp_f32 v6, v6"); a("s_nop 0")
            a("v_add_f32 v6, 1.0, v6")
            a("v_rcp_f32 v6, v6")
            a("v_and_b32 v7, 31, v1"); a("v_lshlrev_b32 v7, 2, v7")
            a("s_lshl_b32 s12, s10, 7"); a(f"s_add_u32 s12, s12, {G_OFF}")
            a("s_mov_b32 exec_lo, 0")
            a(f"buffer_store_dword v6, v7, {sr(SWS,4)}, s12 offen")
            for r in range(12,16): a(f"v_mov_b32 v{q+r}, 0")
            a("s_mov_b64 exec, -1")
            a(f"s_mov_b32 s82, {f2u(QSCALE):#x}")
            for r in range(16): a(f"v_mul_f32 v{q+r}, s82, v{q+r}")
            a("s_lshl_b32 s12, s10, 4"); a("s_add_u32 s12, s12, s5"); a("s_lshl_b32 s12, s12, 11"); a(f"s_add_u32 s12, s12, {Q_OFF}")
            pack_store(q, 0)
        gelu_store(ACC[0], 0)
        if not kv:
            a("s_cmp_ge_u32 s6, 12")
            a(f"s_cbranch_scc1 {K}_exit")
            gelu_store(ACC[1], 2)
        a("s_endpgm")
    variant("p1_n_A", True, False)
    variant("p1_n_B", False, False)
    variant("p1_kv_A", True, True)
    variant("p1_kv_B", False, True)
    a.label(f"{K}_exit")
    a("s_endpgm")
    kdesc(a, K, 144)
    return 4*SLOT

def k2(a):
    K = "attn_kernel"
    SWS = 44
    SLOT = 32768
    vD, vB, vCur, vNxt = 2, 3, 4, 5
    Q, NEGM, S, O, P, KB, VB, T = 8, 16, [32, 48], 64, 80, [88, 96], [104, 112], 120
    prologue(a, K)
    a(f"v_lshlrev_b32 v{vD}, 4, v1")
    a("s_lshr_b32 s6, s3, 2")
    a("s_and_b32 s7, s3, 3")
    a("s_lshl_b32 s8, s6, 14")
    a(f"v_add_u32 v{vB}, s8, v{vD}")
    a("s_lshr_b32 s9, s5, 1")
    a("s_lshl_b32 s10, s6, 5"); a("s_add_u32 s10, s10, s7"); a("s_lshl_b32 s10, s10, 12")
    if KV_OFF: a(f"s_add_u32 s10, s10, {KV_OFF}")
    a("s_lshl_b32 s11, s3, 12")
    a("s_lshl_b32 s12, s4, 2"); a("s_add_u32 s12, s12, s7")
    a("s_lshl_b32 s13, s12, 4"); a("s_add_u32 s13, s13, s5"); a("s_lshl_b32 s13, s13, 11")
    a(f"s_add_u32 s14, s13, {Q_OFF}")
    a("s_waitcnt lgkmcnt(0)")
    srd(a, SWS, PWS, WS_BYTES)
    a(f"buffer_load_dwordx4 {vr(Q,4)}, v{vD}, {sr(SWS,4)}, s14 offen")
    a(f"buffer_load_dwordx4 {vr(Q+4,4)}, v{vD}, {sr(SWS,4)}, s14 offen offset:1024")
    def dma():
        a("s_add_u32 s62, s60, s9"); a("s_and_b32 s62, s62, 7"); a("s_lshl_b32 s62, s62, 14"); a("s_add_u32 s62, s62, s10")
        a("s_add_u32 m0, s61, s11")
        a("s_add_u32 s60, s60, 1")
        for f in range(4):
            a(f"buffer_load_dwordx4 v{vD}, {sr(SWS,4)}, s62 offen offset:{f*1024} lds")
        a(f"s_add_u32 s61, s61, {SLOT}")
        a(f"s_cmp_ge_u32 s61, {3*SLOT}")
        a("s_cselect_b32 s61, 0, s61")
    a("s_mov_b32 s60, 0"); a("s_mov_b32 s61, 0")
    dma(); dma()
    a(f"v_mov_b32 v{vCur}, v{vB}")
    a(f"v_add_u32 v{vNxt}, {SLOT}, v{vB}")
    a(f"s_mov_b32 s63, {SLOT}")
    for r in range(16): a(f"v_mov_b32 v{O+r}, 0")
    a("s_waitcnt vmcnt(4)")
    a("s_barrier")
    def rdK(b, addr, tile):
        a(f"ds_read_b128 {vr(KB[b],4)}, v{addr} offset:{tile*4096}")
        a(f"ds_read_b128 {vr(KB[b]+4,4)}, v{addr} offset:{tile*4096+1024}")
    def rdV(b, addr, tile):
        a(f"ds_read_b128 {vr(VB[b],4)}, v{addr} offset:{tile*4096+2048}")
        a(f"ds_read_b128 {vr(VB[b]+4,4)}, v{addr} offset:{tile*4096+3072}")
    rdK(0, vCur, 0)
    rdK(1, vCur, 1); rdV(0, vCur, 0)
    a("s_waitcnt lgkmcnt(4)")
    mfma(a, S[0], KB[0], Q, "0")
    mfma(a, S[0], KB[0]+4, Q+4)
    a.nop(12)
    s = S[0]
    a(f"v_max3_f32 v{T}, v{s}, v{s+1}, v{s+2}")
    a(f"v_max3_f32 v{T+1}, v{s+3}, v{s+4}, v{s+5}")
    a(f"v_max3_f32 v{T+2}, v{s+6}, v{s+7}, v{s+8}")
    a(f"v_max3_f32 v{T+3}, v{s+9}, v{s+10}, v{s+11}")
    a(f"v_max3_f32 v{T}, v{T}, v{s+12}, v{s+13}")
    a(f"v_max3_f32 v{T+1}, v{T+1}, v{s+14}, v{s+15}")
    a(f"v_max3_f32 v{T}, v{T}, v{T+1}, v{T+2}")
    a(f"v_max_f32 v{T}, v{T}, v{T+3}")
    a(f"v_mov_b32 v{T+1}, v{T}")
    a.nop(2)
    a(f"v_permlane32_swap_b32 v{T}, v{T+1}")
    a.nop(1)
    a(f"v_max_f32 v{T}, v{T}, v{T+1}")
    for r in range(16): a(f"v_sub_f32 v{NEGM+r}, 0, v{T}")
    a.nop(2)
    mfma(a, S[0], KB[0], Q, NEGM)
    mfma(a, S[0], KB[0]+4, Q+4)
    a.nop(8)
    a("s_mov_b32 s64, 0")
    a(".p2align 6")
    a.label("attn_loop")
    for t in range(4):
        b = t & 1
        sc, sn = S[b], S[b^1]
        if t == 2:
            a("s_waitcnt vmcnt(0)")
            a("s_barrier")
            a("s_cmp_ge_u32 s60, 8")
            a("s_cbranch_scc1 attn_nodma")
            dma()
            a.label("attn_nodma")
        rdK(b, vCur if t < 2 else vNxt, (t+2) & 3)
        rdV(b^1, vCur if t < 3 else vNxt, (t+1) & 3)
        a("s_waitcnt lgkmcnt(4)")
        mfma(a, sn, KB[b^1], Q, NEGM)
        for r in range(0,4): a(f"v_exp_f32 v{sc+r}, v{sc+r}")
        mfma(a, sn, KB[b^1]+4, Q+4)
        for r in range(4,8): a(f"v_exp_f32 v{sc+r}, v{sc+r}")
        for p in range(0,4): a(f"v_cvt_pk_bf16_f32 v{P+p}, v{sc+2*p}, v{sc+2*p+1}")
        for r in range(8,12): a(f"v_exp_f32 v{sc+r}, v{sc+r}")
        mfma(a, O, VB[b], P)
        for r in range(12,16): a(f"v_exp_f32 v{sc+r}, v{sc+r}")
        for p in range(4,8): a(f"v_cvt_pk_bf16_f32 v{P+p}, v{sc+2*p}, v{sc+2*p+1}")
        if t == 3:
            a(f"v_mov_b32 v{vCur}, v{vNxt}")
            a(f"s_add_u32 s63, s63, {SLOT}")
            a(f"s_cmp_ge_u32 s63, {3*SLOT}")
            a("s_cselect_b32 s63, 0, s63")
            a(f"v_add_u32 v{vNxt}, s63, v{vB}")
            a("s_add_u32 s64, s64, 1")
            a("s_cmp_lt_u32 s64, 8")
        else:
            a.nop(2)
        mfma(a, O, VB[b]+4, P+4)
    a("s_cbranch_scc1 attn_loop")
    a("s_waitcnt lgkmcnt(0)")
    a.nop(12)
    a("s_barrier")
    a(f"s_mul_i32 s8, s7, {5*1024}")
    a(f"v_add_u32 v6, s8, v{vD}")
    a("s_cmp_eq_u32 s6, 0")
    a("s_cbranch_scc1 attn_lo")
    for q in range(4): a(f"ds_write_b128 v6, {vr(O+4*q,4)} offset:{q*1024}")
    a(f"ds_write_b128 v6, {vr(NEGM,4)} offset:4096")
    a("s_waitcnt lgkmcnt(0)")
    a("s_barrier")
    a("s_endpgm")
    a.label("attn_lo")
    a("s_barrier")
    for q in range(4): a(f"ds_read_b128 {vr(S[0]+4*q,4)}, v6 offset:{q*1024}")
    a(f"ds_read_b128 {vr(S[1],4)}, v6 offset:4096")
    a("s_waitcnt lgkmcnt(0)")
    a(f"v_min_f32 v{T}, v{NEGM}, v{S[1]}")
    a(f"v_sub_f32 v{T+1}, v{T}, v{NEGM}")
    a(f"v_sub_f32 v{T+2}, v{T}, v{S[1]}")
    a(f"v_exp_f32 v{T+1}, v{T+1}")
    a(f"v_exp_f32 v{T+2}, v{T+2}")
    a.nop(1)
    for r in range(16): a(f"v_mul_f32 v{O+r}, v{T+1}, v{O+r}")
    for r in range(16): a(f"v_fmac_f32 v{O+r}, v{T+2}, v{S[0]+r}")
    a(f"v_mov_b32 v{T+3}, v{O+12}")
    a(f"v_mov_b32 v{T+4}, v{O+12}")
    a.nop(2)
    a(f"v_permlane32_swap_b32 v{T+3}, v{T+4}")
    a.nop(1)
    a(f"v_rcp_f32 v{T+4}, v{T+4}")
    a("s_mov_b32 exec_lo, 0")
    for r in range(12,16): a(f"v_mov_b32 v{O+r}, 0")
    a("s_mov_b64 exec, -1")
    for r in range(16): a(f"v_mul_f32 v{O+r}, v{T+4}, v{O+r}")
    for p in range(8): a(f"v_cvt_pk_bf16_f32 v{P+p}, v{O+2*p}, v{O+2*p+1}")
    a(f"s_add_u32 s14, s13, {O_OFF}")
    a(f"buffer_store_dwordx4 {vr(P,4)}, v{vD}, {sr(SWS,4)}, s14 offen")
    a(f"buffer_store_dwordx4 {vr(P+4,4)}, v{vD}, {sr(SWS,4)}, s14 offen offset:1024")
    a.label(f"{K}_exit")
    a("s_endpgm")
    kdesc(a, K, 136)
    return 3*SLOT

def k3(a):
    K = "out_kernel"
    SLOT = 32768
    SWS, SW2, SWO, SB2, SOUT = 44, 48, 52, 56, 60
    vD, vW, vHr, vWr, cHr, cWr = 2, 3, 4, 5, 6, 7
    AB, AA = 16, 32
    HF = [48+4*i for i in range(4)]
    WF = [64+4*i for i in range(4)]
    T = 80
    NST = 18
    prologue(a, K)
    tbl_lookup(a, 6, P3_TBL, 8)
    a("s_cmp_eq_u32 s6, 15")
    a(f"s_cbranch_scc1 {K}_exit")
    a("s_cmp_ge_u32 s6, 7")
    a("s_cselect_b32 s7, 1, 0")
    a("s_mul_i32 s8, s7, 7"); a("s_sub_u32 s8, s6, s8")
    a("s_lshl_b32 s9, s4, 2"); a("s_lshl_b32 s7, s7, 1"); a("s_add_u32 s9, s9, s7")
    a(f"v_lshlrev_b32 v{vD}, 4, v1")
    a("v_lshrrev_b32 v80, 3, v1"); a("v_and_b32 v81, 7, v1"); a("v_lshrrev_b32 v82, 4, v1")
    a("v_and_b32 v83, 1, v82"); a("v_lshlrev_b32 v83, 2, v83"); a("v_xor_b32 v83, v81, v83")
    a("s_lshl_b32 s10, s3, 4"); a("v_add_u32 v84, s10, v80"); a("v_mul_u32_u24 v84, 896, v84")
    a("v_lshl_add_u32 v84, v83, 4, v84"); a("s_lshl_b32 s10, s8, 7"); a(f"v_add_u32 v{vW}, s10, v84")
    a("s_lshr_b32 s13, s3, 2"); a("s_add_u32 s13, s13, s9")
    a("s_and_b32 s14, s3, 3"); a("s_lshl_b32 s14, s14, 1")
    a("s_mul_i32 s11, s13, 112"); a("s_add_u32 s11, s11, s14"); a("s_lshl_b32 s11, s11, 10"); a(f"s_add_u32 s11, s11, {H_OFF}")
    a("s_lshl_b32 s12, s13, 5"); a("s_add_u32 s12, s12, s14"); a("s_lshl_b32 s12, s12, 10"); a(f"s_add_u32 s12, s12, {O_OFF}")
    a("s_lshl_b32 s15, s3, 11")
    a("s_and_b32 s64, s3, 1"); a("s_lshl_b32 s65, s64, 13"); a(f"v_add_u32 v{vHr}, s65, v{vD}")
    a("v_lshrrev_b32 v85, 5, v1")
    a("v_bfe_u32 v86, v1, 2, 2")
    a("v_lshl_add_u32 v87, v85, 2, v86")
    a("v_and_b32 v88, 1, v82"); a("v_bfe_u32 v89, v1, 1, 1"); a("v_lshl_add_u32 v89, v88, 1, v89")
    a("v_lshrrev_b32 v90, 1, v86"); a("s_bfe_u32 s66, s3, 0x10001"); a("v_xor_b32 v90, s66, v90")
    a("v_lshl_add_u32 v89, v90, 2, v89")
    a("v_lshlrev_b32 v90, 7, v87"); a("v_lshl_add_u32 v90, v89, 4, v90"); a("v_and_b32 v91, 1, v1")
    a(f"v_lshl_add_u32 v{vWr}, v91, 3, v90")
    a("v_lshlrev_b32 v92, 3, v85")
    a("v_and_b32 v93, 31, v1")
    a("v_lshlrev_b32 v94, 2, v93")
    a("s_waitcnt lgkmcnt(0)")
    srd(a, SWS, PWS, WS_BYTES); srd(a, SW2, PW2, 1792*896); srd(a, SWO, PWO, 448*896); srd(a, SB2, PB2, 896); srd(a, SOUT, POUT, 2048*896)
    a("s_lshl_b32 s67, s8, 7"); a("s_lshl_b32 s68, s66, 6"); a("s_add_u32 s67, s67, s68")
    for g4 in range(4):
        a(f"buffer_load_dwordx2 {vr(T+16+2*g4,2)}, v92, {sr(SB2,4)}, s67 offen offset:{16*g4}")
    a("s_add_u32 s68, s9, s64"); a("s_lshl_b32 s69, s68, 7"); a(f"s_add_u32 s69, s69, {G_OFF}")
    a(f"buffer_load_dword v8, v94, {sr(SWS,4)}, s69 offen")
    def dma(st):
        slot = (st % 4) * SLOT
        a(f"s_add_u32 m0, s15, {slot}")
        if st < 14:
            a(f"s_add_u32 s70, s11, {st*8192}")
        else:
            a(f"s_add_u32 s70, s12, {(st-14)*8192}")
        a(f"buffer_load_dwordx4 v{vD}, {sr(SWS,4)}, s70 offen lds")
        a(f"buffer_load_dwordx4 v{vD}, {sr(SWS,4)}, s70 offen offset:1024 lds")
        w = SW2 if st < 14 else SWO
        base = st*128*896 if st < 14 else (st-14)*112*896
        a(f"s_add_u32 m0, s15, {slot+16384}")
        a(f"s_mov_b32 s70, {base}")
        a(f"buffer_load_dwordx4 v{vW}, {sr(w,4)}, s70 offen lds")
        a(f"s_add_u32 m0, s15, {slot+16384+1024}")
        a(f"s_mov_b32 s70, {base+8*896}")
        a(f"buffer_load_dwordx4 v{vW}, {sr(w,4)}, s70 offen lds")
    D = 4
    for st in range(4): dma(st)
    a(f"s_waitcnt vmcnt({4*D})")
    for g4 in range(4): unpack_bf16x4(a, AB+4*g4, T+16+2*g4)
    for r in range(16): a(f"v_mov_b32 v{AA+r}, 0")
    a("s_cmp_ge_u32 s3, 4")
    a("s_cbranch_scc1 out_loader")
    def stage_sync(st):
        later = min(max(3, st+2), NST-1) - st
        a(f"s_waitcnt vmcnt({later*D})")
        a("s_barrier")
    def reads(st, ks):
        b = ks & 3
        a(f"ds_read_b128 {vr(HF[b],4)}, v{cHr} offset:{ks*1024}")
        for t in range(2):
            row = 16*ks + 8*t if st < 14 else 28*(ks>>1) + 16*(ks&1) + 8*t
            a(f"ds_read_b64_tr_b16 {vr(WF[b]+2*t,2)}, v{cWr} offset:{16384+row*128}")
    for st in range(NST):
        slot = (st % 4) * SLOT
        a(f"v_add_u32 v{cHr}, {slot}, v{vHr}")
        a(f"v_add_u32 v{cWr}, {slot}, v{vWr}")
        stage_sync(st)
        for ks in range(3): reads(st, ks)
        if 1 <= st and st+3 < NST: dma(st+3)
        for ks in range(8):
            if ks+3 < 8:
                reads(st, ks+3)
                a("s_waitcnt lgkmcnt(9)")
            else:
                a(f"s_waitcnt lgkmcnt({3*(7-ks)})")
            mfma(a, AB if st < 14 else AA, WF[ks&3], HF[ks&3])
    a("v_sub_f32 v9, 1.0, v8")
    a("s_lshl_b32 s68, s68, 5"); a("v_add_u32 v93, s68, v93"); a("v_mul_u32_u24 v93, 896, v93")
    a("v_lshl_add_u32 v93, v85, 4, v93")
    a.nop(10)
    for r in range(16): a(f"v_mul_f32 v{AB+r}, v9, v{AB+r}")
    for r in range(16): a(f"v_fmac_f32 v{AB+r}, v8, v{AA+r}")
    for p in range(8): a(f"v_cvt_pk_bf16_f32 v{T+p}, v{AB+2*p}, v{AB+2*p+1}")
    a.nop(2)
    for qq in range(2):
        a(f"v_permlane32_swap_b32 v{T+4*qq}, v{T+4*qq+2}")
        a(f"v_permlane32_swap_b32 v{T+4*qq+1}, v{T+4*qq+3}")
    a.nop(1)
    for qq in range(2):
        a(f"buffer_store_dwordx4 {vr(T+4*qq,4)}, v93, {sr(SOUT,4)}, s67 offen offset:{32*qq}")
    a("s_endpgm")
    a.label("out_loader")
    for st in range(NST):
        stage_sync(st)
        if 1 <= st and st+3 < NST: dma(st+3)
    a.label(f"{K}_exit")
    a("s_endpgm")
    kdesc(a, K, 112)
    return 4*SLOT

def main():
    body = Asm()
    body('.amdgcn_target "amdgcn-amd-amdhsa--gfx950"')
    body(".text")
    l1 = k1(body); l2 = k2(body); l3 = k3(body)
    probs = check(body.lines, "v1")
    for p in probs: print("HAZARD", p, file=sys.stderr)
    hdr = [f"; @launch kernel=p1_kernel grid=(256,1,1) block=(512,1,1) lds={l1}",
           f"; @launch kernel=attn_kernel grid=(256,1,1) block=(512,1,1) lds={l2}",
           f"; @launch kernel=out_kernel grid=(256,1,1) block=(512,1,1) lds={l3}"]
    out = sys.argv[1] if len(sys.argv) > 1 else f"cdna_kernels/{NAME}.s"
    open(out, "w").write("\n".join(hdr) + "\n" + body.text())
    print("wrote", out, len(body.lines), "lines")
main()
```
